```python
import torch

def _softmax(x, axis=-1):
    return torch.softmax(x, dim=axis)
def _gelu(x):
    return torch.nn.functional.gelu(x, approximate="tanh")
def _silu(x):
    return torch.nn.functional.silu(x)
def _sigmoid(x):
    return torch.sigmoid(x)
def _layernorm(x, axis=-1, eps=1e-5):
    m = x.mean(dim=axis, keepdim=True)
    v = x.var(dim=axis, keepdim=True, unbiased=False)
    return (x - m) / torch.sqrt(v + eps)
def _scatter_add(tgt, idx, src, axis=0):
    return tgt.clone().index_add_(axis, idx, src)
def _segment_sum(src, seg, n):
    out = torch.zeros((n,) + src.shape[1:], dtype=src.dtype)
    return out.index_add_(0, seg, src)
def _pad(x, pw):
    flat = tuple(v for pair in reversed(pw) for v in pair)
    return torch.nn.functional.pad(x, flat)

kernel_name = 'standalone__linear_kernel_rfa__decode'

def setup_inputs():

    _w = (lambda a: (lambda t: t.to(torch.bfloat16) if t.is_floating_point() else t)(torch.as_tensor(a)))
    B, H, Sq, Sk, D, M = 4, 32, 1, 8192, 128, 64
    return {
        "q": _w((lambda *s: torch.randn(*s, dtype=torch.bfloat16) * 0.4)(B, H, Sq, D)),
        "k": _w((lambda *s: torch.randn(*s, dtype=torch.bfloat16) * 1.6)(B, H, Sk, D)),
        "v": _w((lambda *s: torch.randn(*s, dtype=torch.bfloat16) * 1.6)(B, H, Sk, D)),
        "omega": _w((lambda *s: torch.randn(*s, dtype=torch.bfloat16) * 1.6)(M, D)),
    }

def reference(q, k, v, omega):
    d = q.shape[-1]
    m = omega.shape[0]
    scale = float(d) ** -0.25
    qs = q * scale
    ks = k * scale
    q_proj = torch.einsum("bhsd,md->bhsm", qs, omega)
    k_proj = torch.einsum("bhsd,md->bhsm", ks, omega)
    q_sq = 0.5 * torch.einsum("bhsd,bhsd->bhs", qs, qs)[..., None]
    k_sq = 0.5 * torch.einsum("bhsd,bhsd->bhs", ks, ks)[..., None]
    inv_sqrt_m = float(m) ** -0.5
    phi_q = torch.exp(q_proj - q_sq) * inv_sqrt_m + 1e-6
    phi_k = torch.exp(k_proj - k_sq) * inv_sqrt_m + 1e-6
    kv = torch.einsum("bhsm,bhsd->bhmd", phi_k, v)
    z  = torch.einsum("bhsm->bhm", phi_k)
    num = torch.einsum("bhqm,bhmd->bhqd", phi_q, kv)
    den = torch.einsum("bhqm,bhm->bhq", phi_q, z)[..., None] + 1e-6
    return num / den
```

```python
import struct, argparse

def f2u(x):
    return struct.unpack("<I", struct.pack("<f", x))[0]

NAME = "standalone__linear_kernel_rfa__decode"
HEADER = """; Kernarg layout for this problem (56 bytes, ptrs only, base s[0:1]):
"""

def div_seq(e, num, den, tmp, sdummy):
    a, b, rc, t0, t1 = tmp, tmp+1, tmp+2, tmp+3, tmp+4
    e(f"v_div_scale_f32 v{a}, s[{sdummy}:{sdummy+1}], v{den}, v{den}, v{num}")
    e(f"v_div_scale_f32 v{b}, vcc, v{num}, v{den}, v{num}")
    e(f"v_rcp_f32 v{rc}, v{a}")
    e("s_nop 0")
    e(f"v_fma_f32 v{t0}, -v{a}, v{rc}, 1.0")
    e(f"v_fma_f32 v{rc}, v{t0}, v{rc}, v{rc}")
    e(f"v_mul_f32 v{t0}, v{b}, v{rc}")
    e(f"v_fma_f32 v{t1}, -v{a}, v{t0}, v{b}")
    e(f"v_fma_f32 v{t0}, v{t1}, v{rc}, v{t0}")
    e(f"v_fma_f32 v{t1}, -v{a}, v{t0}, v{b}")
    e(f"v_div_fmas_f32 v{t0}, v{t1}, v{rc}, v{t0}")
    e(f"v_div_fixup_f32 v{num}, v{t0}, v{den}, v{num}")

def gen(U=4, D=4, nt="nt", wavecontig=False, mode1=False, stamp=False, stflag="sc1"):
    NW = 4
    SCALE = 128.0 ** -0.25
    LOG2E = 1.4426950408889634
    C_PROJ = SCALE * LOG2E
    C_SQ = -0.5 * SCALE * SCALE * LOG2E
    assert D % U == 0
    G = 512 // (NW * U)
    LG = G.bit_length() - 1
    HC = 256 // G
    R = 128 // HC
    NP = (R + 15) // 16
    UNITS = R * U
    assert UNITS == 64
    BLK = NW * U * 4096
    WIN = 256 * BLK
    L = []
    def e(s): L.append("    " + s)
    def lab(s): L.append(s + ":")
    def c(s): L.append("    ; " + s)
    ntf = (" " + nt) if nt else ""

    vLane, vOffK, vOffV, vCA, vOne, vDen, vP, vX = 0, 1, 2, 3, 4, 5, 6, 7
    vG = 8; vEps = 12; vMask = 16; vAcc = 20; vAt = 24; vPhq = 32; vD = 48; vOm = 64
    vLW, vLS, vLR, vWS = 128, 129, 130, 131
    NV = 132
    def vr(b, n=4): return f"v[{b}:{b+n-1}]"
    def ar(b, n=4): return f"a[{b}:{b+n-1}]"
    def aK(slot, t): return ar(slot * 32 + t * 4)
    def aV(slot, r): return ar(slot * 32 + 16 + r * 4)
    NA = 32 * D
    sK, sV, sO, sQ = 20, 24, 28, 32
    sOffK, sOffV = 36, 37
    sCProj, sC0125, sCnt, sRnd, sWave, sT0, sT1, sRows = 38, 39, 40, 41, 42, 43, 44, 45
    sM = 46
    sHi = 54
    STASH = 8192
    LDS = STASH + NP * 5120
    if mode1:
        USTEP = G * NW * 4096; WGOFF = None
    elif wavecontig:
        USTEP = 4096
    else:
        USTEP = NW * 4096

    L.append(HEADER.rstrip())
    L.append(f"; @launch kernel={NAME}_kernel grid=(256,1,1) block=(256,1,1) lds={LDS}")
    L.append(f"; @launch kernel=rfa_combine_kernel grid=(128,1,1) block=(64,1,1) lds=0")
    L.append('.amdgcn_target "amdgcn-amd-amdhsa--gfx950"')
    L.append(".text")
    L.append(f".globl {NAME}_kernel")
    L.append(".p2align 8")
    L.append(f".type {NAME}_kernel,@function")
    lab(f"{NAME}_kernel")
    e("s_cmp_ge_u32 s2, 256")
    e("s_cbranch_scc1 L_exit")
    if stamp: e("s_memrealtime s[56:57]")
    e("s_load_dwordx8 s[4:11], s[0:1], 0")
    e("s_load_dwordx2 s[16:17], s[0:1], 48")
    e(f"v_lshrrev_b32 v{vX}, 6, v0")
    e(f"v_and_b32 v{vLane}, 63, v0")
    e(f"v_readfirstlane_b32 s{sWave}, v{vX}")
    e(f"v_and_b32 v{vP}, 15, v{vLane}")
    e(f"v_lshrrev_b32 v{vX}, 4, v{vLane}")
    c("vOffV = 16*lane (row 4r+g in load r) ; vOffK = pi(j)*256 + 16*g, pi(4a+b)=4b+a")
    e(f"v_lshlrev_b32 v{vOffV}, 4, v{vLane}")
    e(f"v_and_b32 v{vOffK}, 3, v{vP}")
    e(f"v_lshlrev_b32 v{vOffK}, 10, v{vOffK}")
    e(f"v_lshrrev_b32 v{vDen}, 2, v{vP}")
    e(f"v_lshl_add_u32 v{vOffK}, v{vDen}, 8, v{vOffK}")
    e(f"v_lshl_add_u32 v{vOffK}, v{vX}, 4, v{vOffK}")
    c("omega lane offset = j*256 + 16g -> vAt ; q lane offset = j*HC*256 + 16g -> vAt+1")
    e(f"v_lshlrev_b32 v{vAt+1}, 4, v{vX}")
    e(f"v_lshl_add_u32 v{vAt}, v{vP}, 8, v{vAt+1}")
    e(f"v_lshl_add_u32 v{vAt+1}, v{vP}, {8 + (HC.bit_length()-1)}, v{vAt+1}")
    if mode1:
        e(f"s_lshr_b32 s{sT0}, s2, {LG}")
        e(f"s_lshl_b32 s{sOffK}, s{sT0}, 21")
        e(f"s_and_b32 s{sT0}, s2, {G-1}")
        e(f"s_lshl_b32 s{sT0}, s{sT0}, 14")
        e(f"s_add_u32 s{sOffK}, s{sOffK}, s{sT0}")
        e(f"s_lshl_b32 s{sT0}, s{sWave}, 12")
    else:
        e(f"s_mul_i32 s{sOffK}, s2, {BLK}")
        e(f"s_mul_i32 s{sT0}, s{sWave}, {4096*U if wavecontig else 4096}")
    e(f"s_add_u32 s{sOffK}, s{sOffK}, s{sT0}")
    e(f"s_mov_b32 s{sOffV}, s{sOffK}")
    e(f"s_mov_b32 s{sK+2}, 0x10000000")
    e(f"s_mov_b32 s{sK+3}, 0x00020000")
    e(f"s_mov_b32 s{sV+2}, 0x10000000")
    e(f"s_mov_b32 s{sV+3}, 0x00020000")
    e(f"s_mov_b32 s{sO+2}, 16384")
    e(f"s_mov_b32 s{sO+3}, 0x00020000")
    e(f"s_mov_b32 s{sQ+2}, 32768")
    e(f"s_mov_b32 s{sQ+3}, 0x00020000")
    e(f"s_lshr_b32 s{sT0}, s2, {LG}")
    e(f"s_lshl_b32 s{sT0}, s{sT0}, 8")
    e("s_waitcnt lgkmcnt(0)")
    e(f"s_mov_b32 s{sK}, s6")
    e(f"s_and_b32 s{sK+1}, s7, 0xffff")
    e(f"s_mov_b32 s{sV}, s8")
    e(f"s_and_b32 s{sV+1}, s9, 0xffff")
    e(f"s_mov_b32 s{sO}, s10")
    e(f"s_and_b32 s{sO+1}, s11, 0xffff")
    e(f"s_mov_b32 s{sQ}, s4")
    e(f"s_and_b32 s{sQ+1}, s5, 0xffff")

    def step(u):
        return USTEP if (u % U) != U - 1 else WIN - (U - 1) * USTEP
    def loadK(slot):
        for t in range(4):
            e(f"buffer_load_dwordx4 {aK(slot,t)}, v{vOffK}, s[{sK}:{sK+3}], s{sOffK} offen offset:{64*t}{ntf}")
        e(f"s_add_u32 s{sOffK}, s{sOffK}, {step(slot)}")
    def loadV(slot):
        for r in range(4):
            e(f"buffer_load_dwordx4 {aV(slot,r)}, v{vOffV}, s[{sV}:{sV+3}], s{sOffV} offen offset:{1024*r}{ntf}")
        e(f"s_add_u32 s{sOffV}, s{sOffV}, {step(slot)}")

    c("prologue loads: K0, q, omega, V0, K1, V1, ...")
    loadK(0)
    qreg = [vPhq, vAt + 0]
    QB = [vPhq, 132]
    if NP == 2: NV = 148
    for p in range(NP):
        if p: e(f"s_add_u32 s{sT0}, s{sT0}, {16*HC*256}")
        for t in range(4):
            e(f"buffer_load_dwordx4 {vr(QB[p]+4*t)}, v{vAt+1}, s[{sQ}:{sQ+3}], s{sT0} offen offset:{64*t}")
    for mb in range(4):
        e(f"s_movk_i32 s{sT1}, {4096*mb}")
        for t in range(4):
            e(f"buffer_load_dwordx4 {vr(vOm+16*mb+4*t)}, v{vAt}, s[{sO}:{sO+3}], s{sT1} offen offset:{64*t}")
    loadV(0)
    npre = min(D, 4)
    for s in range(1, npre):
        loadK(s); loadV(s)
    c("constants")
    e(f"s_mov_b32 s{sCProj}, 0x{f2u(C_PROJ):08x}")
    e(f"s_mov_b32 s{sC0125}, 0x{f2u(0.125):08x}")
    e(f"s_mov_b32 s{sRows}, 0x{f2u(float(U*16)):08x}")
    e(f"v_mov_b32 v{vCA}, 0x{f2u(C_SQ):08x}")
    e(f"v_mov_b32 v{vOne}, 1.0")
    c("diag masks: lane(g,j): 4g+r == j")
    e(f"v_lshlrev_b32 v{vDen}, 2, v{vX}")
    e(f"v_sub_u32 v{vDen}, v{vP}, v{vDen}")
    for r in range(4):
        e(f"v_cmp_eq_u32 s[{sM+2*r}:{sM+2*r+1}], {r}, v{vDen}")
    e(f"v_cmp_lt_u32 s[{sHi}:{sHi+1}], 31, v{vLane}")
    c("selector masks")
    e(f"v_and_b32 v{vDen}, 1, v{vP}")
    e(f"v_lshlrev_b32 v{vDen}, 4, v{vDen}")
    e(f"v_mov_b32 v{vG}, 0xffff")
    e(f"v_lshlrev_b32 v{vG}, v{vDen}, v{vG}")
    e(f"v_lshrrev_b32 v{vDen}, 1, v{vP}")
    for q in range(4):
        e(f"v_cmp_eq_u32 vcc, {q}, v{vDen}")
        e("s_nop 1")
        e(f"v_cndmask_b32 v{vMask+q}, 0, v{vG}, vcc")
    c("LDS write addr: wave*1024 + (lane<32 ? 32j+16g : 16*lane) ; stash read addr = STASH + 256g ; read addr 8*lane")
    e(f"v_lshlrev_b32 v{vLW}, 5, v{vP}")
    e(f"v_lshl_add_u32 v{vLW}, v{vX}, 4, v{vLW}")
    e(f"v_cndmask_b32 v{vLW}, v{vLW}, v{vOffV}, s[{sHi}:{sHi+1}]")
    e(f"s_lshl_b32 s{sT1}, s{sWave}, 10")
    e(f"v_add_u32 v{vLW}, s{sT1}, v{vLW}")
    e(f"v_lshlrev_b32 v{vLS}, 8, v{vX}")
    e(f"v_lshlrev_b32 v{vLR}, 3, v{vLane}")
    c("ws slot of round rho: ((rho*HC + gamma)*G + wgin)*1024 = (rho*256 + wg)*1024")
    e(f"s_lshl_b32 s{sT1}, s2, 10")
    e(f"v_add_u32 v{vWS}, s{sT1}, v{vOffV}")
    for r in range(4):
        e(f"v_mov_b32 v{vAcc+r}, 0")
    e(f"v_mov_b32 v{vDen}, 0")
    e(f"v_mov_b32 v{vAt+2}, 0x{f2u(1e-6):08x}")
    c("phi_q for 16 heads per pass (column j = round)")
    e(f"s_waitcnt vmcnt({4 + 8*(npre-1)})")
    for p in range(NP):
        qb = QB[p]
        for t in range(4):
            e(f"v_mfma_f32_16x16x32_bf16 {vr(vG)}, {vr(qb+4*t)}, {vr(qb+4*t)}, {('0' if t==0 else vr(vG))}")
        for mb in range(4):
            for t in range(4):
                e(f"v_mfma_f32_16x16x32_bf16 {vr(vD+4*mb)}, {vr(vOm+16*mb+4*t)}, {vr(qb+4*t)}, {('0' if t==0 else vr(vD+4*mb))}")
        if p == 0:
            for s in range(npre, D):
                loadK(s); loadV(s)
        e(f"v_cndmask_b32 v{vX}, 0, v{vG}, s[{sM}:{sM+1}]")
        for r in range(1, 4):
            e(f"v_cndmask_b32 v{vX}, v{vX}, v{vG+r}, s[{sM+2*r}:{sM+2*r+1}]")
        e("s_nop 1")
        e(f"v_mfma_f32_16x16x4_f32 {vr(vG)}, v{vCA}, v{vX}, 0")
        e("s_nop 9")
        for i in range(16):
            e(f"v_fma_f32 v{vD+i}, v{vD+i}, s{sCProj}, v{vG}")
        for i in range(16):
            e(f"v_exp_f32 v{vD+i}, v{vD+i}")
        e("s_nop 0")
        for i in range(16):
            e(f"v_fma_f32 v{vD+i}, v{vD+i}, s{sC0125}, v{vAt+2}")
        e(f"v_add_f32 v{vP}, v{vD}, v{vD+1}")
        for i in range(2, 16):
            e(f"v_add_f32 v{vP}, v{vP}, v{vD+i}")
        e("s_nop 1")
        e(f"v_mfma_f32_16x16x4_f32 {vr(vEps)}, v{vAt+2}, v{vP}, 0")
        for i in range(16):
            e(f"v_mul_f32 v{vD+i}, s{sC0125}, v{vD+i}")
        for k in range(4):
            e(f"ds_write_b128 v{vOffV}, {vr(vD+4*k)} offset:{STASH + p*5120 + 1024*k}")
        e(f"ds_write_b128 v{vOffV}, {vr(vEps)} offset:{STASH + p*5120 + 4096}")
        e("s_waitcnt lgkmcnt(0)")
    def stash_read():
        for k in range(4):
            e(f"ds_read_b128 {vr(vPhq+4*k)}, v{vLS} offset:{STASH + 1024*k}")
        e(f"ds_read_b128 {vr(vEps)}, v{vLS} offset:{STASH + 4096}")
    stash_read()
    e(f"s_mov_b32 s{sCnt}, {UNITS//D - 1}")
    e(f"s_mov_b32 s{sRnd}, 0")
    e("s_waitcnt lgkmcnt(0)")

    def unit(slot, cK, cV, refill):
        e(f"s_waitcnt vmcnt({cK})")
        for t in range(4):
            e(f"v_mfma_f32_16x16x32_bf16 {vr(vG)}, {aK(slot,t)}, {aK(slot,t)}, {('0' if t==0 else vr(vG))}")
        def proj(mb, ts):
            for t in ts:
                e(f"v_mfma_f32_16x16x32_bf16 {vr(vD+4*mb)}, {vr(vOm+16*mb+4*t)}, {aK(slot,t)}, {('0' if t==0 else vr(vD+4*mb))}")
        proj(0, range(4)); proj(1, range(4))
        e(f"v_cndmask_b32 v{vX}, 0, v{vG}, s[{sM}:{sM+1}]")
        for r in range(1, 4):
            e(f"v_cndmask_b32 v{vX}, v{vX}, v{vG+r}, s[{sM+2*r}:{sM+2*r+1}]")
        proj(2, (0, 1))
        e(f"v_mfma_f32_16x16x4_f32 {vr(vG)}, v{vCA}, v{vX}, 0")
        proj(2, (2, 3)); proj(3, range(4))
        if refill:
            loadK(slot)
        else:
            e("s_nop 4")
        for i in range(0, 16, 2):
            e(f"v_fma_f32 v{vD+i}, v{vD+i}, s{sCProj}, v{vG}")
            e(f"v_fma_f32 v{vD+i+1}, v{vD+i+1}, s{sCProj}, v{vG}")
            e(f"v_exp_f32 v{vD+i}, v{vD+i}")
            e(f"v_exp_f32 v{vD+i+1}, v{vD+i+1}")
            if i == 0:
                e(f"v_mul_f32 v{vP}, v{vD+i}, v{vPhq+i}")
            else:
                e(f"v_fmac_f32 v{vP}, v{vD+i}, v{vPhq+i}")
            e(f"v_fmac_f32 v{vP}, v{vD+i+1}, v{vPhq+i+1}")
        e(f"v_add_f32 v{vDen}, v{vDen}, v{vP}")
        e("s_nop 0")
        e(f"v_mfma_f32_16x16x4_f32 {vr(vG)}, v{vP}, v{vOne}, {vr(vEps)}")
        e(f"s_waitcnt vmcnt({cV})")
        e("s_nop 8")
        for r in range(4):
            e(f"v_cvt_pk_bf16_f32 v{vG+r}, v{vG+r}, v{vG+r}")
        for r in range(4):
            b = vAt + 4 * (r & 1)
            for q in range(4):
                e(f"v_and_b32 v{b+q}, v{vG+r}, v{vMask+q}")
            if r >= 1:
                pb = vAt + 4 * ((r - 1) & 1)
                e(f"v_mfma_f32_16x16x32_bf16 {vr(vAcc)}, {vr(pb)}, {aV(slot,r-1)}, {vr(vAcc)}")
        e("s_nop 0")
        e(f"v_mfma_f32_16x16x32_bf16 {vr(vAcc)}, {vr(vAt+4)}, {aV(slot,3)}, {vr(vAcc)}")
        if refill:
            loadV(slot)

    uid = [0]
    def round_end(last):
        c("---- round end ----")
        for sh in (8, 4, 2, 1):
            e("s_nop 1")
            e(f"v_add_f32_dpp v{vDen}, v{vDen}, v{vDen} row_ror:{sh} row_mask:0xf bank_mask:0xf")
        e("s_nop 1")
        e(f"v_mfma_f32_16x16x4_f32 {vr(vG)}, v{vOne}, v{vDen}, 0")
        e(f"v_mov_b32 v{vDen}, 0")
        e(f"s_and_b32 s{sT0}, s{sRnd}, 3")
        e(f"s_add_u32 s{sRnd}, s{sRnd}, 1")
        if not last:
            if NP == 2:
                e(f"s_cmp_eq_u32 s{sRnd}, 16")
                e(f"s_cselect_b32 s{sT1}, {5120 - 15*16}, 16")
                e(f"v_add_u32 v{vLS}, s{sT1}, v{vLS}")
                e("s_nop 3")
            else:
                e(f"v_add_u32 v{vLS}, 16, v{vLS}")
                e("s_nop 5")
        else:
            e("s_nop 6")
        e(f"v_fma_f32 v{vG}, v{vEps}, s{sRows}, v{vG}")
        e(f"v_cndmask_b32 v{vAcc}, v{vAcc}, v{vG}, s[{sHi}:{sHi+1}]")
        e(f"ds_write_b128 v{vLW}, {vr(vAcc)}")
        if not last:
            stash_read()
            e(f"v_xor_b32 v{vLW}, 4096, v{vLW}")
        e("s_waitcnt lgkmcnt(0)")
        if not last:
            for r in range(4):
                e(f"v_mov_b32 v{vAcc+r}, 0")
        e("s_barrier")
        uid[0] += 1
        skip = f"L_skip{uid[0]}"
        e(f"s_cmp_lg_u32 s{sT0}, s{sWave}")
        e(f"s_cbranch_scc1 {skip}")
        e(f"v_and_b32 v{vX}, 4096, v{vLR}")
        for w in range(NW):
            e(f"ds_read_b64 v[{vD+2*w}:{vD+2*w+1}], v{vLR} offset:{1024*w}")
            e(f"ds_read_b32 v{vD+8+w}, v{vX} offset:{1024*w+512}")
        e("s_waitcnt lgkmcnt(0)")
        e(f"v_add_f32 v{vD+12}, v{vD}, v{vD+2}")
        e(f"v_add_f32 v{vD+13}, v{vD+1}, v{vD+3}")
        e(f"v_add_f32 v{vD+14}, v{vD+8}, v{vD+9}")
        for w in range(2, NW):
            e(f"v_add_f32 v{vD+12}, v{vD+12}, v{vD+2*w}")
            e(f"v_add_f32 v{vD+13}, v{vD+13}, v{vD+2*w+1}")
            e(f"v_add_f32 v{vD+14}, v{vD+14}, v{vD+8+w}")
        e(f"global_store_dwordx4 v{vWS}, {vr(vD+12)}, s[16:17] {stflag}")
        e("s_nop 1")
        lab(skip)
        if not last:
            e(f"v_xor_b32 v{vLR}, 4096, v{vLR}")
            e(f"v_add_u32 v{vWS}, 0x40000, v{vWS}")

    L.append(".p2align 6")
    lab("L_loop")
    for s in range(D):
        unit(s, 8*D-4, 8*D-4, True)
        if s % U == U - 1: round_end(False)
    e(f"s_sub_u32 s{sCnt}, s{sCnt}, 1")
    e(f"s_cmp_lg_u32 s{sCnt}, 0")
    e("s_cbranch_scc1 L_loop")
    for s in range(D):
        rem = D - 1 - s
        unit(s, 8*rem + 4, 8*rem, False)
        if stamp and s == D - 1: e("s_memrealtime s[58:59]")
        if s % U == U - 1: round_end(s == D - 1)
    if stamp:
        e("s_waitcnt vmcnt(0)")
        e("s_memrealtime s[60:61]")
        e(f"s_mul_i32 s{sT0}, s2, {NW}")
        e(f"s_add_u32 s{sT0}, s{sT0}, s{sWave}")
        e(f"s_lshl_b32 s{sT0}, s{sT0}, 5")
        e(f"s_add_u32 s{sT0}, s{sT0}, 0x4000000")
        e("s_waitcnt lgkmcnt(0)")
        for i in range(6):
            e(f"v_mov_b32 v{vD+i}, s{56+i}")
        e(f"v_mov_b32 v{vX}, s{sT0}")
        e("s_mov_b64 exec, 1")
        e(f"global_store_dwordx4 v{vX}, {vr(vD)}, s[16:17]")
        e(f"global_store_dwordx2 v{vX}, v[{vD+4}:{vD+5}], s[16:17] offset:16")
    lab("L_exit")
    e("s_endpgm")

    L.append(".globl rfa_combine_kernel")
    L.append(".p2align 8")
    L.append(".type rfa_combine_kernel,@function")
    lab("rfa_combine_kernel")
    e("s_cmp_ge_u32 s2, 128")
    e("s_cbranch_scc1 L_cexit")
    e("s_load_dwordx2 s[4:5], s[0:1], 32")
    e("s_load_dwordx2 s[6:7], s[0:1], 48")
    e(f"s_mul_i32 s3, s2, {G*1024}")
    e("v_lshlrev_b32 v1, 4, v0")
    e("v_add_u32 v1, s3, v1")
    e("s_lshl_b32 s3, s2, 8")
    e("v_lshlrev_b32 v2, 2, v0")
    e("v_add_u32 v2, s3, v2")
    e("s_waitcnt lgkmcnt(0)")
    CH = min(G, 32)
    first = True
    for base in range(0, G, CH):
        for p in range(CH):
            if p % 4 == 0 and (base + p): e("v_add_u32 v1, 4096, v1")
            e(f"global_load_dwordx3 v[{8+4*p}:{8+4*p+2}], v1, s[6:7] offset:{1024*(p%4)}")
        for p in range(CH):
            e(f"s_waitcnt vmcnt({CH-1-p})")
            for k in range(3):
                if first: e(f"v_mov_b32 v{4+k}, v{8+k}")
                else: e(f"v_add_f32 v{4+k}, v{4+k}, v{8+4*p+k}")
            first = False
    e(f"v_add_f32 v6, 0x{f2u(1e-6):08x}, v6")
    div_seq(e, 4, 6, 8, 10)
    div_seq(e, 5, 6, 8, 10)
    e("v_cvt_pk_bf16_f32 v4, v4, v5")
    e("global_store_dword v2, v4, s[4:5]")
    lab("L_cexit")
    e("s_endpgm")

    L.append('.section .rodata,"a"')
    for nm, nv, na, ns in ((f"{NAME}_kernel", NV, NA, 72), ("rfa_combine_kernel", 8 + 4*CH, 0, 16)):
        L.append(".p2align 6")
        L.append(f".amdhsa_kernel {nm}")
        L.append(f"  .amdhsa_next_free_vgpr {max(nv+na, 264) if na else nv}")
        L.append(f"  .amdhsa_next_free_sgpr {ns}")
        L.append(f"  .amdhsa_accum_offset {nv}")
        L.append("  .amdhsa_group_segment_fixed_size 0")
        L.append("  .amdhsa_kernarg_size 56")
        L.append("  .amdhsa_user_sgpr_count 2")
        L.append("  .amdhsa_user_sgpr_kernarg_segment_ptr 1")
        L.append("  .amdhsa_system_sgpr_workgroup_id_x 1")
        L.append("  .amdhsa_float_denorm_mode_32 3")
        L.append(".end_amdhsa_kernel")
    return "\n".join(L) + "\n"

if __name__ == "__main__":
    ap = argparse.ArgumentParser()
    ap.add_argument("--u", type=int, default=4)
    ap.add_argument("--d", type=int, default=4)
    ap.add_argument("--nt", default="nt")
    ap.add_argument("--wavecontig", action="store_true")
    ap.add_argument("--mode1", action="store_true")
    ap.add_argument("--stamp", action="store_true")
    ap.add_argument("--stflag", default="sc1")
    ap.add_argument("-o", default="standalone__linear_kernel_rfa__decode.s")
    a = ap.parse_args()
    open(a.o, "w").write(gen(U=a.u, D=a.d, nt=a.nt, wavecontig=a.wavecontig, mode1=a.mode1, stamp=a.stamp, stflag=a.stflag))
```

```python
import struct, argparse
from gen2 import HEADER, NAME, f2u, div_seq

def gen(NW=4, D=8, nt="nt", C=1, stamp=False, pipe=False):
    SCALE = 128.0 ** -0.25
    LOG2E = 1.4426950408889634
    C_PROJ = SCALE * LOG2E
    C_SQ = -0.5 * SCALE * SCALE * LOG2E
    UNITS = 256 // NW
    assert UNITS % D == 0 and UNITS // D >= 2 and D % C == 0
    L = []
    def e(s): L.append("    " + s)
    def lab(s): L.append(s + ":")
    def c(s): L.append("    ; " + s)
    ntf = (" " + nt) if nt else ""

    vLane, vOffK, vOffV, vCA, vOne, vDen, vP, vX = 0, 1, 2, 3, 4, 5, 6, 7
    vG = 8; vEps = 12; vMask = 16; vAcc = 20; vAt = 24; vPhq = 32; vD = 48; vOm = 64
    vLW = 128
    NV = 132
    def vr(b, n=4): return f"v[{b}:{b+n-1}]"
    def ar(b, n=4): return f"a[{b}:{b+n-1}]"
    def aS(slot, t): return ar(slot * 16 + t * 4)
    NA = 16 * D
    sK, sV, sO, sQ = 20, 24, 28, 32
    sOff = 36
    sCProj, sC0125, sCnt, sHead, sWave, sT0, sT1, sOff0 = 38, 39, 40, 41, 42, 43, 44, 45
    sM = 46
    WST = NW * 1024
    LDS = WST + NW * (UNITS + 1) * 64

    L.append(HEADER.rstrip())
    L.append(f"; @launch grid=(256,1,1) block=({NW*64},1,1) lds={LDS}")
    L.append('.amdgcn_target "amdgcn-amd-amdhsa--gfx950"')
    L.append(".text")
    L.append(f".globl {NAME}_kernel")
    L.append(".p2align 8")
    L.append(f".type {NAME}_kernel,@function")
    lab(f"{NAME}_kernel")
    e("s_cmp_ge_u32 s2, 256")
    e("s_cbranch_scc1 L_exit")
    if stamp: e("s_memrealtime s[56:57]")
    e("s_load_dwordx8 s[4:11], s[0:1], 0")
    e("s_load_dwordx4 s[12:15], s[0:1], 32")
    e("s_load_dwordx2 s[16:17], s[0:1], 48")
    e(f"v_lshrrev_b32 v{vX}, 6, v0")
    e(f"v_and_b32 v{vLane}, 63, v0")
    e(f"v_readfirstlane_b32 s{sWave}, v{vX}")
    e(f"v_and_b32 v{vP}, 15, v{vLane}")
    e(f"v_lshrrev_b32 v{vX}, 4, v{vLane}")
    c("vOffV = 16*lane (row 4r+g in load r) ; vOffK = pi(j)*256 + 16*g, pi(4a+b)=4b+a")
    e(f"v_lshlrev_b32 v{vOffV}, 4, v{vLane}")
    e(f"v_and_b32 v{vOffK}, 3, v{vP}")
    e(f"v_lshlrev_b32 v{vOffK}, 10, v{vOffK}")
    e(f"v_lshrrev_b32 v{vDen}, 2, v{vP}")
    e(f"v_lshl_add_u32 v{vOffK}, v{vDen}, 8, v{vOffK}")
    e(f"v_lshl_add_u32 v{vOffK}, v{vX}, 4, v{vOffK}")
    c("omega lane offset = j*256 + 16g -> vAt ; q lane offset = 16g -> vAt+1")
    e(f"v_lshlrev_b32 v{vAt+1}, 4, v{vX}")
    e(f"v_lshl_add_u32 v{vAt}, v{vP}, 8, v{vAt+1}")
    e(f"s_lshr_b32 s{sHead}, s2, 1")
    e(f"s_lshl_b32 s{sT0}, s2, 20")
    e(f"s_mul_i32 s{sOff0}, s{sWave}, {4096*C}")
    e(f"s_mov_b32 s{sOff}, s{sOff0}")
    e(f"s_mov_b32 s{sK+2}, 0x100000")
    e(f"s_mov_b32 s{sK+3}, 0x00020000")
    e(f"s_mov_b32 s{sV+2}, 0x100000")
    e(f"s_mov_b32 s{sV+3}, 0x00020000")
    e(f"s_mov_b32 s{sO+2}, 16384")
    e(f"s_mov_b32 s{sO+3}, 0x00020000")
    e(f"s_mov_b32 s{sQ+2}, 32768")
    e(f"s_mov_b32 s{sQ+3}, 0x00020000")
    e("s_waitcnt lgkmcnt(0)")
    e(f"s_add_u32 s{sK}, s6, s{sT0}")
    e(f"s_addc_u32 s{sK+1}, s7, 0")
    e(f"s_and_b32 s{sK+1}, s{sK+1}, 0xffff")
    e(f"s_mov_b32 s{sO}, s10")
    e(f"s_and_b32 s{sO+1}, s11, 0xffff")
    e(f"s_mov_b32 s{sQ}, s4")
    e(f"s_and_b32 s{sQ+1}, s5, 0xffff")

    def step(slot):
        return 4096 if (slot % C) != C - 1 else 4096 * (NW * C - (C - 1))
    def loadK(slot):
        for t in range(4):
            e(f"buffer_load_dwordx4 {aS(slot,t)}, v{vOffK}, s[{sK}:{sK+3}], s{sOff} offen offset:{64*t}{ntf}")
        e(f"s_add_u32 s{sOff}, s{sOff}, {step(slot)}")
    def loadV(slot):
        for r in range(4):
            e(f"buffer_load_dwordx4 {aS(slot,r)}, v{vOffV}, s[{sV}:{sV+3}], s{sOff} offen offset:{1024*r}{ntf}")
        e(f"s_add_u32 s{sOff}, s{sOff}, {step(slot)}")

    c("prologue loads: K0, K1, q, omega, K2, ...")
    loadK(0); loadK(1)
    e(f"s_add_u32 s{sV}, s8, s{sT0}")
    e(f"s_addc_u32 s{sV+1}, s9, 0")
    e(f"s_and_b32 s{sV+1}, s{sV+1}, 0xffff")
    e(f"s_lshl_b32 s{sT0}, s{sHead}, 8")
    for t in range(4):
        e(f"buffer_load_dwordx4 {vr(vPhq+4*t)}, v{vAt+1}, s[{sQ}:{sQ+3}], s{sT0} offen offset:{64*t}")
    for mb in range(4):
        e(f"s_movk_i32 s{sT1}, {4096*mb}")
        for t in range(4):
            e(f"buffer_load_dwordx4 {vr(vOm+16*mb+4*t)}, v{vAt}, s[{sO}:{sO+3}], s{sT1} offen offset:{64*t}")
    npre = min(D, 8)
    for s in range(2, npre):
        loadK(s)
    c("constants")
    e(f"s_mov_b32 s{sCProj}, 0x{f2u(C_PROJ):08x}")
    e(f"s_mov_b32 s{sC0125}, 0x{f2u(0.125):08x}")
    e(f"v_mov_b32 v{vCA}, 0x{f2u(C_SQ):08x}")
    e(f"v_mov_b32 v{vOne}, 1.0")
    e(f"v_lshlrev_b32 v{vDen}, 2, v{vX}")
    e(f"v_sub_u32 v{vDen}, v{vP}, v{vDen}")
    for r in range(4):
        e(f"v_cmp_eq_u32 s[{sM+2*r}:{sM+2*r+1}], {r}, v{vDen}")
    e(f"v_and_b32 v{vDen}, 1, v{vP}")
    e(f"v_lshlrev_b32 v{vDen}, 4, v{vDen}")
    e(f"v_mov_b32 v{vG}, 0xffff")
    e(f"v_lshlrev_b32 v{vG}, v{vDen}, v{vG}")
    e(f"v_lshrrev_b32 v{vDen}, 1, v{vP}")
    for q in range(4):
        e(f"v_cmp_eq_u32 vcc, {q}, v{vDen}")
        e("s_nop 1")
        e(f"v_cndmask_b32 v{vMask+q}, 0, v{vG}, vcc")
    c("weights stash address: WST + wave*UNITS*64 + 16g")
    e(f"s_mul_i32 s{sT1}, s{sWave}, {(UNITS+1)*64}")
    e(f"s_add_u32 s{sT1}, s{sT1}, {WST+64}")
    e(f"v_lshlrev_b32 v{vLW}, 4, v{vX}")
    e(f"v_add_u32 v{vLW}, s{sT1}, v{vLW}")
    for r in range(4):
        e(f"v_mov_b32 v{vAcc+r}, 0")
    e(f"v_mov_b32 v{vDen}, 0")
    e(f"v_mov_b32 v{vX}, 0x{f2u(1e-6):08x}")
    c("phi_q")
    e(f"s_waitcnt vmcnt({4*(npre-2)})")
    for t in range(4):
        e(f"v_mfma_f32_16x16x32_bf16 {vr(vG)}, {vr(vPhq+4*t)}, {vr(vPhq+4*t)}, {('0' if t==0 else vr(vG))}")
    for mb in range(4):
        for t in range(4):
            e(f"v_mfma_f32_16x16x32_bf16 {vr(vD+4*mb)}, {vr(vOm+16*mb+4*t)}, {vr(vPhq+4*t)}, {('0' if t==0 else vr(vD+4*mb))}")
    for s in range(npre, D):
        loadK(s)
    e(f"v_mul_f32 v{vG}, v{vCA}, v{vG}")
    e("s_nop 7")
    for i in range(16):
        e(f"v_fma_f32 v{vD+i}, v{vD+i}, s{sCProj}, v{vG}")
    for i in range(16):
        e(f"v_exp_f32 v{vD+i}, v{vD+i}")
    e("s_nop 0")
    for i in range(16):
        e(f"v_fma_f32 v{vD+i}, v{vD+i}, s{sC0125}, v{vX}")
    e(f"v_add_f32 v{vP}, v{vD}, v{vD+1}")
    for i in range(2, 16):
        e(f"v_add_f32 v{vP}, v{vP}, v{vD+i}")
    for i in range(16):
        e(f"v_mul_f32 v{vPhq+i}, s{sC0125}, v{vD+i}")
    e(f"v_mfma_f32_16x16x4_f32 {vr(vEps)}, v{vX}, v{vP}, 0")
    e(f"s_mov_b32 s{sCnt}, {UNITS//D - 1}")

    vW = vAt
    def flushW(slot_prev):
        for r in range(4):
            e(f"v_cvt_pk_bf16_f32 v{vW+r}, v{vW+r}, v{vW+r}")
        e(f"ds_write_b128 v{vLW}, {vr(vW)} offset:{64*slot_prev}")

    def kunit(slot, refill, first=False):
        e(f"s_waitcnt vmcnt({4*D-4})")
        for t in range(4):
            e(f"v_mfma_f32_16x16x32_bf16 {vr(vG)}, {aS(slot,t)}, {aS(slot,t)}, {('0' if t==0 else vr(vG))}")
        def proj(mb, ts):
            for t in ts:
                e(f"v_mfma_f32_16x16x32_bf16 {vr(vD+4*mb)}, {vr(vOm+16*mb+4*t)}, {aS(slot,t)}, {('0' if t==0 else vr(vD+4*mb))}")
        proj(0, range(4)); proj(1, range(4))
        e(f"v_cndmask_b32 v{vX}, 0, v{vG}, s[{sM}:{sM+1}]")
        for r in range(1, 4):
            e(f"v_cndmask_b32 v{vX}, v{vX}, v{vG+r}, s[{sM+2*r}:{sM+2*r+1}]")
        proj(2, (0, 1))
        e(f"v_mfma_f32_16x16x4_f32 {vr(vG)}, v{vCA}, v{vX}, 0")
        proj(2, (2, 3))
        flushW((slot - 1) % D)
        if slot == 0:
            e(f"v_add_u32 v{vLW}, {64*D}, v{vLW}")
        proj(3, range(4))
        refill(slot)
        for i in range(0, 16, 2):
            e(f"v_fma_f32 v{vD+i}, v{vD+i}, s{sCProj}, v{vG}")
            e(f"v_fma_f32 v{vD+i+1}, v{vD+i+1}, s{sCProj}, v{vG}")
            e(f"v_exp_f32 v{vD+i}, v{vD+i}")
            e(f"v_exp_f32 v{vD+i+1}, v{vD+i+1}")
            if i == 0:
                e(f"v_mul_f32 v{vP}, v{vD+i}, v{vPhq+i}")
            else:
                e(f"v_fmac_f32 v{vP}, v{vD+i}, v{vPhq+i}")
            e(f"v_fmac_f32 v{vP}, v{vD+i+1}, v{vPhq+i+1}")
        e(f"v_add_f32 v{vDen}, v{vDen}, v{vP}")
        e("s_nop 0")
        e(f"v_mfma_f32_16x16x4_f32 {vr(vW)}, v{vP}, v{vOne}, {vr(vEps)}")

    c("stash pointer starts one body (D units) back: the first flush writes a dummy slot")
    e(f"v_subrev_u32 v{vLW}, {64*D}, v{vLW}")
    L.append(".p2align 6")
    lab("L_kloop")
    for s in range(D):
        kunit(s, loadK)
    e(f"s_sub_u32 s{sCnt}, s{sCnt}, 1")
    e(f"s_cmp_lg_u32 s{sCnt}, 0")
    e("s_cbranch_scc1 L_kloop")
    e(f"s_mov_b32 s{sOff}, s{sOff0}")
    for s in range(D):
        kunit(s, loadV)
    e("s_nop 9")
    flushW(D - 1)
    if stamp: e("s_memrealtime s[62:63]")
    c("---- den reduce (off the critical tail) ----")
    for sh in (8, 4, 2, 1):
        e("s_nop 1")
        e(f"v_add_f32_dpp v{vDen}, v{vDen}, v{vDen} row_ror:{sh} row_mask:0xf bank_mask:0xf")
    e(f"s_mov_b32 s{sT0}, 0x{f2u(float(UNITS*16)):08x}")
    e("s_nop 0")
    e(f"v_mfma_f32_16x16x4_f32 {vr(vG)}, v{vOne}, v{vDen}, 0")
    e(f"v_subrev_u32 v{vLW}, {64*(UNITS-D)}, v{vLW}")
    c("exchange address: lanes<32: wave*1024 + 32j + 16g ; lanes>=32: wave*1024 + 16*lane")
    e(f"v_and_b32 v{vP}, 15, v{vLane}")
    e(f"v_lshrrev_b32 v{vX}, 4, v{vLane}")
    e(f"v_lshlrev_b32 v{vP}, 5, v{vP}")
    e(f"v_lshl_add_u32 v{vP}, v{vX}, 4, v{vP}")
    e(f"v_cmp_lt_u32 s[{sM}:{sM+1}], 31, v{vLane}")
    e(f"s_lshl_b32 s{sT1}, s{sWave}, 10")
    e("s_nop 0")
    e(f"v_cndmask_b32 v{vP}, v{vP}, v{vOffV}, s[{sM}:{sM+1}]")
    e(f"v_add_u32 v{vP}, s{sT1}, v{vP}")
    e("s_nop 1")
    e(f"v_fma_f32 v{vDen}, v{vEps}, s{sT0}, v{vG}")
    vWt = vPhq
    e("s_waitcnt lgkmcnt(0)")
    e(f"ds_read_b128 {vr(vWt)}, v{vLW}")
    e(f"s_mov_b32 s{sCnt}, {UNITS//D - 1}")

    def vunit(slot, cV, refill, lastunit=False):
        cur = vWt + 4 * (slot & 1); nxt = vWt + 4 * ((slot + 1) & 1)
        e("s_waitcnt lgkmcnt(0)")
        if not lastunit:
            e(f"ds_read_b128 {vr(nxt)}, v{vLW} offset:{64*(slot+1)}")
        for r in range(4):
            for q in range(4):
                e(f"v_and_b32 v{vD+4*r+q}, v{cur+r}, v{vMask+q}")
        e(f"s_waitcnt vmcnt({cV})")
        e("s_nop 0")
        for r in range(4):
            e(f"v_mfma_f32_16x16x32_bf16 {vr(vAcc)}, {vr(vD+4*r)}, {aS(slot,r)}, {vr(vAcc)}")
        if refill:
            loadV(slot)

    L.append(".p2align 6")
    lab("L_vloop")
    for s in range(D):
        vunit(s, 4*D-4, True)
    e(f"v_add_u32 v{vLW}, {64*D}, v{vLW}")
    e(f"s_sub_u32 s{sCnt}, s{sCnt}, 1")
    e(f"s_cmp_lg_u32 s{sCnt}, 0")
    e("s_cbranch_scc1 L_vloop")
    for s in range(D):
        vunit(s, 4*(D-1-s), False, s == D-1)
    if stamp: e("s_memrealtime s[58:59]")
    c("---- LDS exchange ----")
    e("s_nop 7")
    e(f"v_cndmask_b32 v{vAcc}, v{vAcc}, v{vDen}, s[{sM}:{sM+1}]")
    e(f"ds_write_b128 v{vP}, {vr(vAcc)}")
    e("s_waitcnt lgkmcnt(0)")
    e("s_barrier")
    e(f"s_cmp_lg_u32 s{sWave}, 0")
    e("s_cbranch_scc1 L_end")
    e(f"v_lshlrev_b32 v{vP}, 3, v{vLane}")
    e(f"v_mov_b32 v{vX}, 0")
    for w in range(NW):
        e(f"ds_read_b64 v[{vD+2*w}:{vD+2*w+1}], v{vP} offset:{1024*w}")
        e(f"ds_read_b32 v{vPhq+w}, v{vX} offset:{1024*w+512}")
    e(f"s_lshl_b32 s{sT0}, s2, 10")
    e(f"v_add_u32 v{vOffK}, s{sT0}, v{vOffV}")
    e(f"v_xor_b32 v{vOffV}, 1024, v{vOffK}")
    e(f"s_and_b32 s{sT0}, s{sHead}, 3")
    e(f"s_lshl_b32 s{sT0}, s{sT0}, 3")
    e(f"s_lshl_b32 s{sT1}, 1, s{sT0}")
    e(f"v_mov_b32 v{vCA}, s{sT1}")
    e(f"s_and_b32 s{sT1}, s{sHead}, 0xfc")
    e(f"v_mov_b32 v{vOne}, s{sT1}")
    e("s_waitcnt lgkmcnt(0)")
    e(f"v_add_f32 v{vAcc}, v{vD}, v{vD+2}")
    e(f"v_add_f32 v{vAcc+1}, v{vD+1}, v{vD+3}")
    e(f"v_add_f32 v{vAcc+2}, v{vPhq}, v{vPhq+1}")
    for w in range(2, NW):
        e(f"v_add_f32 v{vAcc}, v{vAcc}, v{vD+2*w}")
        e(f"v_add_f32 v{vAcc+1}, v{vAcc+1}, v{vD+2*w+1}")
        e(f"v_add_f32 v{vAcc+2}, v{vAcc+2}, v{vPhq+w}")
    e(f"global_store_dwordx4 v{vOffK}, {vr(vAcc)}, s[16:17] sc1")
    e("s_waitcnt vmcnt(0)")
    e("s_mov_b64 exec, 1")
    e(f"global_atomic_add v{vX}, v{vOne}, v{vCA}, s[14:15] sc0")
    e("s_waitcnt vmcnt(0)")
    e(f"v_readfirstlane_b32 s{sT1}, v{vX}")
    e("s_mov_b64 exec, -1")
    e(f"s_lshr_b32 s{sT1}, s{sT1}, s{sT0}")
    e(f"s_and_b32 s{sT1}, s{sT1}, 0xff")
    e(f"s_cmp_lg_u32 s{sT1}, 1")
    e("s_cbranch_scc1 L_end")
    e(f"global_load_dwordx4 {vr(vD)}, v{vOffV}, s[16:17] sc1")
    e(f"s_lshl_b32 s{sT0}, s{sHead}, 8")
    e(f"v_lshlrev_b32 v{vOffK}, 2, v{vLane}")
    e(f"v_add_u32 v{vOffK}, s{sT0}, v{vOffK}")
    e("s_waitcnt vmcnt(0)")
    e(f"v_add_f32 v{vAcc}, v{vAcc}, v{vD}")
    e(f"v_add_f32 v{vAcc+1}, v{vAcc+1}, v{vD+1}")
    e(f"v_add_f32 v{vAcc+2}, v{vAcc+2}, v{vD+2}")
    e(f"v_add_f32 v{vAcc+2}, 0x{f2u(1e-6):08x}, v{vAcc+2}")
    div_seq(e, vAcc, vAcc+2, vD, sM)
    div_seq(e, vAcc+1, vAcc+2, vD, sM)
    e(f"v_cvt_pk_bf16_f32 v{vAcc}, v{vAcc}, v{vAcc+1}")
    e(f"global_store_dword v{vOffK}, v{vAcc}, s[12:13]")
    lab("L_end")
    if stamp:
        e("s_waitcnt vmcnt(0)")
        e("s_memrealtime s[60:61]")
        e(f"s_mul_i32 s{sT0}, s2, {NW}")
        e(f"s_add_u32 s{sT0}, s{sT0}, s{sWave}")
        e(f"s_lshl_b32 s{sT0}, s{sT0}, 5")
        e(f"s_add_u32 s{sT0}, s{sT0}, 0x100000")
        e("s_waitcnt lgkmcnt(0)")
        for i in range(8):
            e(f"v_mov_b32 v{vD+i}, s{56+i}")
        e(f"v_mov_b32 v{vX}, s{sT0}")
        e("s_mov_b64 exec, 1")
        e(f"global_store_dwordx4 v{vX}, {vr(vD)}, s[16:17]")
        e(f"global_store_dwordx4 v{vX}, {vr(vD+4)}, s[16:17] offset:16")
    lab("L_exit")
    e("s_endpgm")
    L.append('.section .rodata,"a"')
    L.append(".p2align 6")
    L.append(f".amdhsa_kernel {NAME}_kernel")
    nfv = NV + NA
    if NW == 4: nfv = max(nfv, 264)
    L.append(f"  .amdhsa_next_free_vgpr {nfv}")
    L.append("  .amdhsa_next_free_sgpr 72")
    L.append(f"  .amdhsa_accum_offset {NV}")
    L.append("  .amdhsa_group_segment_fixed_size 0")
    L.append("  .amdhsa_kernarg_size 56")
    L.append("  .amdhsa_user_sgpr_count 2")
    L.append("  .amdhsa_user_sgpr_kernarg_segment_ptr 1")
    L.append("  .amdhsa_system_sgpr_workgroup_id_x 1")
    L.append("  .amdhsa_float_denorm_mode_32 3")
    L.append(".end_amdhsa_kernel")
    return "\n".join(L) + "\n"

if __name__ == "__main__":
    ap = argparse.ArgumentParser()
    ap.add_argument("--nw", type=int, default=4)
    ap.add_argument("--d", type=int, default=8)
    ap.add_argument("--c", type=int, default=1)
    ap.add_argument("--nt", default="nt")
    ap.add_argument("--stamp", action="store_true")
    ap.add_argument("-o", default="standalone__linear_kernel_rfa__decode.s")
    a = ap.parse_args()
    open(a.o, "w").write(gen(NW=a.nw, D=a.d, nt=a.nt, C=a.c, stamp=a.stamp))
```

```python
import struct, argparse
from gen2 import HEADER, NAME, f2u, div_seq

def gen(NW=4, D=8, nt="nt", C=1, stamp=False, pipe=False):
    SCALE = 128.0 ** -0.25
    LOG2E = 1.4426950408889634
    C_PROJ = SCALE * LOG2E
    C_SQ = -0.5 * SCALE * SCALE * LOG2E
    UNITS = 256 // NW
    assert UNITS % D == 0 and UNITS // D >= 2 and D % C == 0
    L = []
    def e(s): L.append("    " + s)
    def lab(s): L.append(s + ":")
    def c(s): L.append("    ; " + s)
    ntf = (" " + nt) if nt else ""

    vLane, vOffK, vOffV, vCA, vOne, vDen, vP, vX = 0, 1, 2, 3, 4, 5, 6, 7
    vG = 8; vEps = 12; vMask = 16; vAcc = 20; vAt = 24; vPhq = 32; vD = 48; vOm = 64
    vLW = 128
    vF = [132, 148]; vDO = 164; vRA = 168
    NV = 172
    def vr(b, n=4): return f"v[{b}:{b+n-1}]"
    def ar(b, n=4): return f"a[{b}:{b+n-1}]"
    def aS(slot, t): return ar(slot * 16 + t * 4)
    NA = 16 * D
    sK, sV, sO, sQ = 20, 24, 28, 32
    sOff = 36
    sCProj, sC0125, sCnt, sHead, sWave, sT0, sT1, sOff0 = 38, 39, 40, 41, 42, 43, 44, 45
    sM = 46
    WST = NW * 1024
    RB = (WST + NW * (UNITS + 1) * 64 + 1023) // 1024 * 1024
    LDS = RB + NW * D * 4096
    sM0 = 54

    L.append(HEADER.rstrip())
    L.append(f"; @launch grid=(256,1,1) block=({NW*64},1,1) lds={LDS}")
    L.append('.amdgcn_target "amdgcn-amd-amdhsa--gfx950"')
    L.append(".text")
    L.append(f".globl {NAME}_kernel")
    L.append(".p2align 8")
    L.append(f".type {NAME}_kernel,@function")
    lab(f"{NAME}_kernel")
    e("s_cmp_ge_u32 s2, 256")
    e("s_cbranch_scc1 L_exit")
    if stamp: e("s_memrealtime s[56:57]")
    e("s_load_dwordx8 s[4:11], s[0:1], 0")
    e("s_load_dwordx4 s[12:15], s[0:1], 32")
    e("s_load_dwordx2 s[16:17], s[0:1], 48")
    e(f"v_lshrrev_b32 v{vX}, 6, v0")
    e(f"v_and_b32 v{vLane}, 63, v0")
    e(f"v_readfirstlane_b32 s{sWave}, v{vX}")
    e(f"v_and_b32 v{vP}, 15, v{vLane}")
    e(f"v_lshrrev_b32 v{vX}, 4, v{vLane}")
    c("vOffV = 16*lane (row 4r+g in load r) ; vOffK = pi(j)*256 + 16*g, pi(4a+b)=4b+a")
    e(f"v_lshlrev_b32 v{vOffV}, 4, v{vLane}")
    c("DMA source offsets: lane(g,j) load r fetches row 4r+g, chunk j ^ (4g+r)")
    e(f"v_lshlrev_b32 v{vDen}, 2, v{vX}")
    e(f"v_xor_b32 v{vDen}, v{vDen}, v{vP}")
    for r in range(4):
        e(f"v_xor_b32 v{vDO+r}, {r}, v{vDen}")
        e(f"v_lshlrev_b32 v{vDO+r}, 4, v{vDO+r}")
        e(f"v_lshl_add_u32 v{vDO+r}, v{vX}, 8, v{vDO+r}")
    e(f"s_mul_i32 s{sM0}, s{sWave}, {D*4096}")
    e(f"s_add_u32 s{sM0}, s{sM0}, {RB}")
    c("omega lane offset = j*256 + 16g -> vAt ; q lane offset = 16g -> vAt+1")
    e(f"v_lshlrev_b32 v{vAt+1}, 4, v{vX}")
    e(f"v_lshl_add_u32 v{vAt}, v{vP}, 8, v{vAt+1}")
    e(f"s_lshr_b32 s{sHead}, s2, 1")
    e(f"s_lshl_b32 s{sT0}, s2, 20")
    e(f"s_mul_i32 s{sOff0}, s{sWave}, {4096*C}")
    e(f"s_mov_b32 s{sOff}, s{sOff0}")
    e(f"s_mov_b32 s{sK+2}, 0x100000")
    e(f"s_mov_b32 s{sK+3}, 0x00020000")
    e(f"s_mov_b32 s{sV+2}, 0x100000")
    e(f"s_mov_b32 s{sV+3}, 0x00020000")
    e(f"s_mov_b32 s{sO+2}, 16384")
    e(f"s_mov_b32 s{sO+3}, 0x00020000")
    e(f"s_mov_b32 s{sQ+2}, 32768")
    e(f"s_mov_b32 s{sQ+3}, 0x00020000")
    e("s_waitcnt lgkmcnt(0)")
    e(f"s_add_u32 s{sK}, s6, s{sT0}")
    e(f"s_addc_u32 s{sK+1}, s7, 0")
    e(f"s_and_b32 s{sK+1}, s{sK+1}, 0xffff")
    e(f"s_mov_b32 s{sO}, s10")
    e(f"s_and_b32 s{sO+1}, s11, 0xffff")
    e(f"s_mov_b32 s{sQ}, s4")
    e(f"s_and_b32 s{sQ+1}, s5, 0xffff")

    def step(slot):
        return 4096 if (slot % C) != C - 1 else 4096 * (NW * C - (C - 1))
    def loadK(slot):
        e(f"s_add_u32 m0, s{sM0}, {4096*slot}")
        e("s_nop 0")
        for r in range(4):
            e(f"buffer_load_dwordx4 v{vDO+r}, s[{sK}:{sK+3}], s{sOff} offen offset:{1024*r}{ntf} lds")
        e(f"s_add_u32 s{sOff}, s{sOff}, {step(slot)}")
    def loadV(slot):
        for r in range(4):
            e(f"buffer_load_dwordx4 {aS(slot,r)}, v{vOffV}, s[{sV}:{sV+3}], s{sOff} offen offset:{1024*r}{ntf}")
        e(f"s_add_u32 s{sOff}, s{sOff}, {step(slot)}")

    def readF(slot, par):
        for t in range(4):
            e(f"ds_read_b128 {vr(vF[par]+4*t)}, v{vRA+t} offset:{4096*slot}")
    c("prologue loads: K0, K1, q, omega, K2, ...")
    loadK(0); loadK(1)
    e(f"s_add_u32 s{sV}, s8, s{sT0}")
    e(f"s_addc_u32 s{sV+1}, s9, 0")
    e(f"s_and_b32 s{sV+1}, s{sV+1}, 0xffff")
    e(f"s_lshl_b32 s{sT0}, s{sHead}, 8")
    for t in range(4):
        e(f"buffer_load_dwordx4 {vr(vPhq+4*t)}, v{vAt+1}, s[{sQ}:{sQ+3}], s{sT0} offen offset:{64*t}")
    for mb in range(4):
        e(f"s_movk_i32 s{sT1}, {4096*mb}")
        for t in range(4):
            e(f"buffer_load_dwordx4 {vr(vOm+16*mb+4*t)}, v{vAt}, s[{sO}:{sO+3}], s{sT1} offen offset:{64*t}")
    npre = min(D, 8)
    for s in range(2, npre):
        loadK(s)
    c("constants")
    e(f"s_mov_b32 s{sCProj}, 0x{f2u(C_PROJ):08x}")
    e(f"s_mov_b32 s{sC0125}, 0x{f2u(0.125):08x}")
    e(f"v_mov_b32 v{vCA}, 0x{f2u(C_SQ):08x}")
    e(f"v_mov_b32 v{vOne}, 1.0")
    e(f"v_lshlrev_b32 v{vDen}, 2, v{vX}")
    e(f"v_sub_u32 v{vDen}, v{vP}, v{vDen}")
    for r in range(4):
        e(f"v_cmp_eq_u32 s[{sM+2*r}:{sM+2*r+1}], {r}, v{vDen}")
    e(f"v_and_b32 v{vDen}, 1, v{vP}")
    e(f"v_lshlrev_b32 v{vDen}, 4, v{vDen}")
    e(f"v_mov_b32 v{vG}, 0xffff")
    e(f"v_lshlrev_b32 v{vG}, v{vDen}, v{vG}")
    e(f"v_lshrrev_b32 v{vDen}, 1, v{vP}")
    for q in range(4):
        e(f"v_cmp_eq_u32 vcc, {q}, v{vDen}")
        e("s_nop 1")
        e(f"v_cndmask_b32 v{vMask+q}, 0, v{vG}, vcc")
    c("fragment read addresses: pi(j)*256 + (((4t+g) ^ j) * 16) + ring base, pi(4a+b)=4b+a")
    e(f"v_and_b32 v{vOffK}, 3, v{vP}")
    e(f"v_lshlrev_b32 v{vOffK}, 10, v{vOffK}")
    e(f"v_lshrrev_b32 v{vDen}, 2, v{vP}")
    e(f"v_lshl_add_u32 v{vOffK}, v{vDen}, 8, v{vOffK}")
    e(f"v_add_u32 v{vOffK}, s{sM0}, v{vOffK}")
    e(f"v_xor_b32 v{vDen}, v{vX}, v{vP}")
    for t in range(4):
        e(f"v_xor_b32 v{vRA+t}, {4*t}, v{vDen}")
        e(f"v_lshl_add_u32 v{vRA+t}, v{vRA+t}, 4, v{vOffK}")
    c("weights stash address: WST + wave*UNITS*64 + 16g")
    e(f"s_mul_i32 s{sT1}, s{sWave}, {(UNITS+1)*64}")
    e(f"s_add_u32 s{sT1}, s{sT1}, {WST+64}")
    e(f"v_lshlrev_b32 v{vLW}, 4, v{vX}")
    e(f"v_add_u32 v{vLW}, s{sT1}, v{vLW}")
    for r in range(4):
        e(f"v_mov_b32 v{vAcc+r}, 0")
    e(f"v_mov_b32 v{vDen}, 0")
    e(f"v_mov_b32 v{vX}, 0x{f2u(1e-6):08x}")
    c("phi_q")
    e(f"s_waitcnt vmcnt({4*(npre-2)})")
    readF(0, 0)
    for t in range(4):
        e(f"v_mfma_f32_16x16x32_bf16 {vr(vG)}, {vr(vPhq+4*t)}, {vr(vPhq+4*t)}, {('0' if t==0 else vr(vG))}")
    for mb in range(4):
        for t in range(4):
            e(f"v_mfma_f32_16x16x32_bf16 {vr(vD+4*mb)}, {vr(vOm+16*mb+4*t)}, {vr(vPhq+4*t)}, {('0' if t==0 else vr(vD+4*mb))}")
    for s in range(npre, D):
        loadK(s)
    e(f"v_mul_f32 v{vG}, v{vCA}, v{vG}")
    e("s_nop 7")
    for i in range(16):
        e(f"v_fma_f32 v{vD+i}, v{vD+i}, s{sCProj}, v{vG}")
    for i in range(16):
        e(f"v_exp_f32 v{vD+i}, v{vD+i}")
    e("s_nop 0")
    for i in range(16):
        e(f"v_fma_f32 v{vD+i}, v{vD+i}, s{sC0125}, v{vX}")
    e(f"v_add_f32 v{vP}, v{vD}, v{vD+1}")
    for i in range(2, 16):
        e(f"v_add_f32 v{vP}, v{vP}, v{vD+i}")
    for i in range(16):
        e(f"v_mul_f32 v{vPhq+i}, s{sC0125}, v{vD+i}")
    e(f"v_mfma_f32_16x16x4_f32 {vr(vEps)}, v{vX}, v{vP}, 0")
    e(f"s_mov_b32 s{sCnt}, {UNITS//D - 1}")

    vW = vAt
    def flushW(slot_prev):
        for r in range(4):
            e(f"v_cvt_pk_bf16_f32 v{vW+r}, v{vW+r}, v{vW+r}")
        e(f"ds_write_b128 v{vLW}, {vr(vW)} offset:{64*slot_prev}")

    def kunit(slot, refill, lastk=False):
        F = vF[slot & 1]
        e("s_waitcnt lgkmcnt(0)")
        refill(slot)
        for t in range(4):
            e(f"v_mfma_f32_16x16x32_bf16 {vr(vG)}, {vr(F+4*t)}, {vr(F+4*t)}, {('0' if t==0 else vr(vG))}")
        def proj(mb, ts):
            for t in ts:
                e(f"v_mfma_f32_16x16x32_bf16 {vr(vD+4*mb)}, {vr(vOm+16*mb+4*t)}, {vr(F+4*t)}, {('0' if t==0 else vr(vD+4*mb))}")
        proj(0, range(4)); proj(1, range(4))
        e(f"v_cndmask_b32 v{vX}, 0, v{vG}, s[{sM}:{sM+1}]")
        for r in range(1, 4):
            e(f"v_cndmask_b32 v{vX}, v{vX}, v{vG+r}, s[{sM+2*r}:{sM+2*r+1}]")
        proj(2, (0, 1))
        e(f"v_mfma_f32_16x16x4_f32 {vr(vG)}, v{vCA}, v{vX}, 0")
        proj(2, (2, 3))
        flushW((slot - 1) % D)
        if slot == 0:
            e(f"v_add_u32 v{vLW}, {64*D}, v{vLW}")
        proj(3, range(4))
        if not lastk:
            e(f"s_waitcnt vmcnt({4*D-4})")
            readF((slot + 1) % D, (slot + 1) & 1)
        for i in range(0, 16, 2):
            e(f"v_fma_f32 v{vD+i}, v{vD+i}, s{sCProj}, v{vG}")
            e(f"v_fma_f32 v{vD+i+1}, v{vD+i+1}, s{sCProj}, v{vG}")
            e(f"v_exp_f32 v{vD+i}, v{vD+i}")
            e(f"v_exp_f32 v{vD+i+1}, v{vD+i+1}")
            if i == 0:
                e(f"v_mul_f32 v{vP}, v{vD+i}, v{vPhq+i}")
            else:
                e(f"v_fmac_f32 v{vP}, v{vD+i}, v{vPhq+i}")
            e(f"v_fmac_f32 v{vP}, v{vD+i+1}, v{vPhq+i+1}")
        e(f"v_add_f32 v{vDen}, v{vDen}, v{vP}")
        e("s_nop 0")
        e(f"v_mfma_f32_16x16x4_f32 {vr(vW)}, v{vP}, v{vOne}, {vr(vEps)}")

    c("stash pointer starts one body (D units) back: the first flush writes a dummy slot")
    e(f"v_subrev_u32 v{vLW}, {64*D}, v{vLW}")
    L.append(".p2align 6")
    lab("L_kloop")
    for s in range(D):
        kunit(s, loadK)
    e(f"s_sub_u32 s{sCnt}, s{sCnt}, 1")
    e(f"s_cmp_lg_u32 s{sCnt}, 0")
    e("s_cbranch_scc1 L_kloop")
    e(f"s_mov_b32 s{sOff}, s{sOff0}")
    for s in range(D):
        kunit(s, loadV, s == D - 1)
    e("s_nop 9")
    flushW(D - 1)
    if stamp: e("s_memrealtime s[62:63]")
    c("---- den reduce (off the critical tail) ----")
    for sh in (8, 4, 2, 1):
        e("s_nop 1")
        e(f"v_add_f32_dpp v{vDen}, v{vDen}, v{vDen} row_ror:{sh} row_mask:0xf bank_mask:0xf")
    e(f"s_mov_b32 s{sT0}, 0x{f2u(float(UNITS*16)):08x}")
    e("s_nop 0")
    e(f"v_mfma_f32_16x16x4_f32 {vr(vG)}, v{vOne}, v{vDen}, 0")
    e(f"v_subrev_u32 v{vLW}, {64*(UNITS-D)}, v{vLW}")
    c("exchange address: lanes<32: wave*1024 + 32j + 16g ; lanes>=32: wave*1024 + 16*lane")
    e(f"v_and_b32 v{vP}, 15, v{vLane}")
    e(f"v_lshrrev_b32 v{vX}, 4, v{vLane}")
    e(f"v_lshlrev_b32 v{vP}, 5, v{vP}")
    e(f"v_lshl_add_u32 v{vP}, v{vX}, 4, v{vP}")
    e(f"v_cmp_lt_u32 s[{sM}:{sM+1}], 31, v{vLane}")
    e(f"s_lshl_b32 s{sT1}, s{sWave}, 10")
    e("s_nop 0")
    e(f"v_cndmask_b32 v{vP}, v{vP}, v{vOffV}, s[{sM}:{sM+1}]")
    e(f"v_add_u32 v{vP}, s{sT1}, v{vP}")
    e("s_nop 1")
    e(f"v_fma_f32 v{vDen}, v{vEps}, s{sT0}, v{vG}")
    vWt = vPhq
    e("s_waitcnt lgkmcnt(0)")
    e(f"ds_read_b128 {vr(vWt)}, v{vLW}")
    e(f"s_mov_b32 s{sCnt}, {UNITS//D - 1}")

    def vunit(slot, cV, refill, lastunit=False):
        cur = vWt + 4 * (slot & 1); nxt = vWt + 4 * ((slot + 1) & 1)
        e("s_waitcnt lgkmcnt(0)")
        if not lastunit:
            e(f"ds_read_b128 {vr(nxt)}, v{vLW} offset:{64*(slot+1)}")
        for r in range(4):
            for q in range(4):
                e(f"v_and_b32 v{vD+4*r+q}, v{cur+r}, v{vMask+q}")
        e(f"s_waitcnt vmcnt({cV})")
        e("s_nop 0")
        for r in range(4):
            e(f"v_mfma_f32_16x16x32_bf16 {vr(vAcc)}, {vr(vD+4*r)}, {aS(slot,r)}, {vr(vAcc)}")
        if refill:
            loadV(slot)

    L.append(".p2align 6")
    lab("L_vloop")
    for s in range(D):
        vunit(s, 4*D-4, True)
    e(f"v_add_u32 v{vLW}, {64*D}, v{vLW}")
    e(f"s_sub_u32 s{sCnt}, s{sCnt}, 1")
    e(f"s_cmp_lg_u32 s{sCnt}, 0")
    e("s_cbranch_scc1 L_vloop")
    for s in range(D):
        vunit(s, 4*(D-1-s), False, s == D-1)
    if stamp: e("s_memrealtime s[58:59]")
    c("---- LDS exchange ----")
    e("s_nop 7")
    e(f"v_cndmask_b32 v{vAcc}, v{vAcc}, v{vDen}, s[{sM}:{sM+1}]")
    e(f"ds_write_b128 v{vP}, {vr(vAcc)}")
    e("s_waitcnt lgkmcnt(0)")
    e("s_barrier")
    e(f"s_cmp_lg_u32 s{sWave}, 0")
    e("s_cbranch_scc1 L_end")
    e(f"v_lshlrev_b32 v{vP}, 3, v{vLane}")
    e(f"v_mov_b32 v{vX}, 0")
    for w in range(NW):
        e(f"ds_read_b64 v[{vD+2*w}:{vD+2*w+1}], v{vP} offset:{1024*w}")
        e(f"ds_read_b32 v{vPhq+w}, v{vX} offset:{1024*w+512}")
    e(f"s_lshl_b32 s{sT0}, s2, 10")
    e(f"v_add_u32 v{vOffK}, s{sT0}, v{vOffV}")
    e(f"v_xor_b32 v{vOffV}, 1024, v{vOffK}")
    e(f"s_and_b32 s{sT0}, s{sHead}, 3")
    e(f"s_lshl_b32 s{sT0}, s{sT0}, 3")
    e(f"s_lshl_b32 s{sT1}, 1, s{sT0}")
    e(f"v_mov_b32 v{vCA}, s{sT1}")
    e(f"s_and_b32 s{sT1}, s{sHead}, 0xfc")
    e(f"v_mov_b32 v{vOne}, s{sT1}")
    e("s_waitcnt lgkmcnt(0)")
    e(f"v_add_f32 v{vAcc}, v{vD}, v{vD+2}")
    e(f"v_add_f32 v{vAcc+1}, v{vD+1}, v{vD+3}")
    e(f"v_add_f32 v{vAcc+2}, v{vPhq}, v{vPhq+1}")
    for w in range(2, NW):
        e(f"v_add_f32 v{vAcc}, v{vAcc}, v{vD+2*w}")
        e(f"v_add_f32 v{vAcc+1}, v{vAcc+1}, v{vD+2*w+1}")
        e(f"v_add_f32 v{vAcc+2}, v{vAcc+2}, v{vPhq+w}")
    e(f"global_store_dwordx4 v{vOffK}, {vr(vAcc)}, s[16:17] sc1")
    e("s_waitcnt vmcnt(0)")
    e("s_mov_b64 exec, 1")
    e(f"global_atomic_add v{vX}, v{vOne}, v{vCA}, s[14:15] sc0")
    e("s_waitcnt vmcnt(0)")
    e(f"v_readfirstlane_b32 s{sT1}, v{vX}")
    e("s_mov_b64 exec, -1")
    e(f"s_lshr_b32 s{sT1}, s{sT1}, s{sT0}")
    e(f"s_and_b32 s{sT1}, s{sT1}, 0xff")
    e(f"s_cmp_lg_u32 s{sT1}, 1")
    e("s_cbranch_scc1 L_end")
    e(f"global_load_dwordx4 {vr(vD)}, v{vOffV}, s[16:17] sc1")
    e(f"s_lshl_b32 s{sT0}, s{sHead}, 8")
    e(f"v_lshlrev_b32 v{vOffK}, 2, v{vLane}")
    e(f"v_add_u32 v{vOffK}, s{sT0}, v{vOffK}")
    e("s_waitcnt vmcnt(0)")
    e(f"v_add_f32 v{vAcc}, v{vAcc}, v{vD}")
    e(f"v_add_f32 v{vAcc+1}, v{vAcc+1}, v{vD+1}")
    e(f"v_add_f32 v{vAcc+2}, v{vAcc+2}, v{vD+2}")
    e(f"v_add_f32 v{vAcc+2}, 0x{f2u(1e-6):08x}, v{vAcc+2}")
    div_seq(e, vAcc, vAcc+2, vD, sM)
    div_seq(e, vAcc+1, vAcc+2, vD, sM)
    e(f"v_cvt_pk_bf16_f32 v{vAcc}, v{vAcc}, v{vAcc+1}")
    e(f"global_store_dword v{vOffK}, v{vAcc}, s[12:13]")
    lab("L_end")
    if stamp:
        e("s_waitcnt vmcnt(0)")
        e("s_memrealtime s[60:61]")
        e(f"s_mul_i32 s{sT0}, s2, {NW}")
        e(f"s_add_u32 s{sT0}, s{sT0}, s{sWave}")
        e(f"s_lshl_b32 s{sT0}, s{sT0}, 5")
        e(f"s_add_u32 s{sT0}, s{sT0}, 0x100000")
        e("s_waitcnt lgkmcnt(0)")
        for i in range(8):
            e(f"v_mov_b32 v{vD+i}, s{56+i}")
        e(f"v_mov_b32 v{vX}, s{sT0}")
        e("s_mov_b64 exec, 1")
        e(f"global_store_dwordx4 v{vX}, {vr(vD)}, s[16:17]")
        e(f"global_store_dwordx4 v{vX}, {vr(vD+4)}, s[16:17] offset:16")
    lab("L_exit")
    e("s_endpgm")
    L.append('.section .rodata,"a"')
    L.append(".p2align 6")
    L.append(f".amdhsa_kernel {NAME}_kernel")
    nfv = NV + NA
    if NW == 4: nfv = max(nfv, 264)
    L.append(f"  .amdhsa_next_free_vgpr {nfv}")
    L.append("  .amdhsa_next_free_sgpr 72")
    L.append(f"  .amdhsa_accum_offset {NV}")
    L.append("  .amdhsa_group_segment_fixed_size 0")
    L.append("  .amdhsa_kernarg_size 56")
    L.append("  .amdhsa_user_sgpr_count 2")
    L.append("  .amdhsa_user_sgpr_kernarg_segment_ptr 1")
    L.append("  .amdhsa_system_sgpr_workgroup_id_x 1")
    L.append("  .amdhsa_float_denorm_mode_32 3")
    L.append(".end_amdhsa_kernel")
    return "\n".join(L) + "\n"

if __name__ == "__main__":
    ap = argparse.ArgumentParser()
    ap.add_argument("--nw", type=int, default=4)
    ap.add_argument("--d", type=int, default=8)
    ap.add_argument("--c", type=int, default=1)
    ap.add_argument("--nt", default="nt")
    ap.add_argument("--stamp", action="store_true")
    ap.add_argument("-o", default="standalone__linear_kernel_rfa__decode.s")
    a = ap.parse_args()
    open(a.o, "w").write(gen(NW=a.nw, D=a.d, nt=a.nt, C=a.c, stamp=a.stamp))
```
